```python
import torch

def _softmax(x, axis=-1):
    return torch.softmax(x, dim=axis)
def _gelu(x):
    return torch.nn.functional.gelu(x, approximate="tanh")
def _silu(x):
    return torch.nn.functional.silu(x)
def _sigmoid(x):
    return torch.sigmoid(x)
def _layernorm(x, axis=-1, eps=1e-5):
    m = x.mean(dim=axis, keepdim=True)
    v = x.var(dim=axis, keepdim=True, unbiased=False)
    return (x - m) / torch.sqrt(v + eps)
def _scatter_add(tgt, idx, src, axis=0):
    return tgt.clone().index_add_(axis, idx, src)
def _segment_sum(src, seg, n):
    out = torch.zeros((n,) + src.shape[1:], dtype=src.dtype)
    return out.index_add_(0, seg, src)
def _pad(x, pw):
    flat = tuple(v for pair in reversed(pw) for v in pair)
    return torch.nn.functional.pad(x, flat)

kernel_name = 'recurrent_scan__linear_attn_block__mixer_token_mlp__prompt'

def setup_inputs():

    _w = (lambda a: (lambda t: t.to(torch.bfloat16) if t.is_floating_point() else t)(torch.as_tensor(a)))
    def _A_setup():
        B, S, D = 1, 2048, 512
        return {
            "x": _w((lambda *s: torch.randn(*s, dtype=torch.bfloat16) * 0.05)(B, S, D)),
            "wqkv": _w((lambda *s: torch.randn(*s, dtype=torch.bfloat16) * 0.2)(D, 3 * D)),
            "wo": _w((lambda *s: torch.randn(*s, dtype=torch.bfloat16) * 0.2)(D, D)),
        }
    _A_in = _A_setup()

    def _B_setup():
        B, S, D, F = 1, 2048, 512, 1376
        return {
            "x": _w((lambda *s: torch.randn(*s, dtype=torch.bfloat16) * 0.05)(B, S, D)),
            "w1": _w((lambda *s: torch.randn(*s, dtype=torch.bfloat16) * 0.4)(S, F) * (S ** -0.5)),
            "b1": _w((lambda *s: torch.randn(*s, dtype=torch.bfloat16) * 3.2)(F) * 0.02),
            "w2": _w((lambda *s: torch.randn(*s, dtype=torch.bfloat16) * 0.2)(F, S) * (F ** -0.5)),
            "b2": _w((lambda *s: torch.randn(*s, dtype=torch.bfloat16) * 0.4)(S) * 0.02),
        }
    _B_in = _B_setup()

    return {
        "A_x": _A_in["x"],
        "A_wqkv": _A_in["wqkv"],
        "A_wo": _A_in["wo"],
        "B_x": _B_in["x"],
        "B_w1": _B_in["w1"],
        "B_b1": _B_in["b1"],
        "B_w2": _B_in["w2"],
        "B_b2": _B_in["b2"],
    }

def reference(A_x, A_wqkv, A_wo, B_x, B_w1, B_b1, B_w2, B_b2):
    def _A_ref(x, wqkv, wo):
        B, S, D = x.shape
        H = 32; Dh = D // H
        qkv = (lambda x, *d: x.permute(*d))((x @ wqkv).reshape(B, S, 3, H, Dh), 2, 0, 3, 1, 4)
        q, k, v = qkv[0], qkv[1], qkv[2]
        phi = lambda t: torch.where(t > 0, t + 1, torch.exp(t)) + 1e-6
        pq, pk = phi(q), phi(k)
        kv = torch.einsum("bhsd,bhse->bhde", pk, v)
        z = torch.einsum("bhsd->bhd", pk)
        num = torch.einsum("bhqd,bhde->bhqe", pq, kv)
        den = torch.einsum("bhqd,bhd->bhq", pq, z)[..., None] + 1e-6
        o = num / den
        return (lambda x, *d: x.permute(*d))(o, 0, 2, 1, 3).reshape(B, S, D) @ wo

    def _B_ref(x, w1, b1, w2, b2):
        B, S, D = x.shape
        h = _layernorm(x, axis=-1)
        u = torch.einsum("bsd,sf->bdf", h, w1) + b1
        u = _gelu(u)
        y = torch.einsum("bdf,fs->bds", u, w2) + b2
        return (lambda x, *d: x.permute(*d))(y, 0, 2, 1)

    x = A_x
    xn = _layernorm(x, axis=-1)
    s = _A_ref(xn, A_wqkv, A_wo)
    g = _silu(_B_ref(xn, B_w1, B_b1, B_w2, B_b2))
    return x + s * g
```

```python
import re

REG_RE = re.compile(r'^(-|\|)?(abs\()?([vas])(\d+|\[(\d+):(\d+)\])\)?\|?$')


def parse_reg(tok):
    tok = tok.strip()
    if tok in ('vcc', 'vcc_lo', 'vcc_hi'):
        return [('s', 'vcc')]
    if tok in ('exec', 'exec_lo', 'exec_hi'):
        return [('s', 'exec')]
    if tok == 'm0':
        return [('s', 'm0')]
    m = REG_RE.match(tok)
    if not m:
        return []
    k = m.group(3)
    if m.group(5) is not None:
        return [(k, i) for i in range(int(m.group(5)), int(m.group(6)) + 1)]
    return [(k, int(m.group(4)))]


def split_ops(s):
    out, depth, cur = [], 0, ''
    for ch in s:
        if ch in '[(':
            depth += 1
        if ch in '])':
            depth -= 1
        if ch == ',' and depth == 0:
            out.append(cur.strip())
            cur = ''
        else:
            cur += ch
    if cur.strip():
        out.append(cur.strip())
    return out


TRANS = ('v_exp_f32', 'v_log_f32', 'v_rcp_f32', 'v_rsq_f32', 'v_sqrt_f32', 'v_sin_f32', 'v_cos_f32')


class Ins:
    def __init__(self, text, tag=None, kind=None):
        self.text = text
        self.tag = tag
        self.kind = kind
        self.dst = []
        self.src = []
        self.cls = None
        self.op = None
        if kind is None:
            self.decode()

    def decode(self):
        t = self.text.split(';')[0].strip()
        parts = t.split(None, 1)
        op = parts[0]
        self.op = op
        rest = parts[1] if len(parts) > 1 else ''
        ops = split_ops(rest)
        mods = ''
        if ops:
            sp = ops[-1].split(None, 1)
            if len(sp) > 1:
                ops[-1] = sp[0]
                mods = sp[1]
        self.mods = mods
        R = [parse_reg(o) for o in ops]
        self.mfma_ab = []
        self.mfma_c = []
        self.store_data = []
        if op.startswith('v_mfma'):
            self.cls = 'mfma'
            self.dst = R[0]
            self.mfma_ab = R[1] + R[2]
            self.mfma_c = R[3]
            self.src = R[1] + R[2] + R[3]
            if '32x32x16' in op:
                self.passes, self.xdl = 8, True
            elif '16x16x32' in op or '16x16x16' in op:
                self.passes, self.xdl = 4, True
            elif op == 'v_mfma_f32_32x32x2_f32':
                self.passes, self.xdl = 16, False
            elif op == 'v_mfma_f32_16x16x4_f32':
                self.passes, self.xdl = 8, False
            else:
                raise ValueError(op)
        elif op.startswith('v_'):
            self.cls = 'valu'
            base = op.replace('_e32', '').replace('_e64', '').replace('_dpp', '').replace('_sdwa', '')
            self.base = base
            self.trans = base in TRANS
            self.dpp = op.endswith('_dpp')
            if base.startswith('v_permlane'):
                self.dst = R[0] + R[1]
                self.src = R[0] + R[1]
            elif base in ('v_add_co_u32', 'v_sub_co_u32', 'v_addc_co_u32'):
                self.dst = R[0] + R[1]
                self.src = sum(R[2:], [])
            elif base == 'v_nop':
                pass
            else:
                self.dst = R[0]
                self.src = sum(R[1:], [])
                if base in ('v_fmac_f32', 'v_dot2c_f32_bf16', 'v_writelane_b32') or self.dpp:
                    self.src = self.src + R[0]
        elif op.startswith('ds_'):
            self.cls = 'ds'
            if op.startswith('ds_read') or op.startswith('ds_bpermute') or op.startswith('ds_swizzle'):
                self.dst = R[0]
                self.src = sum(R[1:], [])
            else:
                self.src = sum(R, [])
        elif op.startswith('buffer_') or op.startswith('global_'):
            self.cls = 'vmem'
            lds = 'lds' in mods.split() or '_lds_' in op
            self.lds = lds
            if op in ('buffer_wbl2', 'buffer_inv'):
                pass
            elif 'load' in op and not lds:
                self.dst = R[0]
                self.src = sum(R[1:], [])
            elif lds:
                self.src = sum(R, []) + [('s', 'm0')]
            elif 'atomic' in op and 'sc0' in mods.split():
                self.dst = R[0]
                self.src = sum(R, [])
            else:
                self.src = sum(R, [])
                if op.endswith('x4') or op.endswith('x3'):
                    self.store_data = R[0] if op.startswith('buffer_') else R[1]
        elif op.startswith('s_load') or op.startswith('s_buffer_load') or op in ('s_memtime', 's_memrealtime'):
            self.cls = 'smem'
            self.dst = R[0]
            self.src = sum(R[1:], [])
        elif op.startswith('s_'):
            self.cls = 'salu'
            if op.startswith('s_cmp') or op.startswith('s_cbranch') or op in (
                    's_branch', 's_barrier', 's_nop', 's_waitcnt', 's_endpgm', 's_sleep', 's_setprio', 's_bitcmp0_b32', 's_bitcmp1_b32',
                    's_setpc_b64'):
                self.src = sum(R, [])
                if op in ('s_cbranch_vccz', 's_cbranch_vccnz'):
                    self.src = [('s', 'vcc')]
            else:
                self.dst = R[0] if R else []
                self.src = sum(R[1:], [])
                if 'saveexec' in op:
                    self.dst = self.dst + [('s', 'exec')]
                if op in ('s_addk_i32', 's_mulk_i32'):
                    self.src = self.src + R[0]
        else:
            raise ValueError('unknown instruction: ' + self.text)

    def states(self):
        if self.kind is not None:
            return 0
        if self.op == 's_nop':
            return int(self.text.split(';')[0].split()[1], 0) + 1
        return 1


class Asm:
    def __init__(self):
        self.ins = []

    def I(self, text, tag=None):
        for line in text.split('\n'):
            line = line.strip()
            if line:
                self.ins.append(Ins(line, tag=tag))

    def label(self, name):
        self.ins.append(Ins(name + ':', kind='label'))

    def raw(self, text):
        self.ins.append(Ins(text, kind='raw'))

    def comment(self, text):
        self.ins.append(Ins('; ' + text, kind='raw'))

    def wait_vm(self, tag=None):
        self.ins.append(Ins('', tag=tag, kind='waitvm'))

    def wait_lgkm(self, tag=None):
        self.ins.append(Ins('', tag=tag, kind='waitlgkm'))

    def reset(self):
        self.ins.append(Ins('', kind='reset'))

    def save_state(self, name):
        self.ins.append(Ins(name, kind='save'))

    def load_state(self, name):
        self.ins.append(Ins(name, kind='load'))

    def finalize(self):
        out = self._waits()
        out = self._hazards(out)
        lines = []
        for i in out:
            if i.kind in ('label',):
                lines.append(i.text)
            elif i.kind == 'raw':
                lines.append(i.text)
            elif i.kind is None:
                lines.append('    ' + i.text)
        return '\n'.join(lines) + '\n'

    def _waits(self):
        out = []
        vm = []
        lg = []
        saved = {}

        def need(q, regs):
            idx = -1
            for n, e in enumerate(q):
                if e[0] & regs:
                    idx = n
            return idx

        def emit(vn, ln):
            nonlocal vm, lg
            parts = []
            if vn is not None:
                vn = min(vn, 63)
                if len(vm) > vn:
                    parts.append('vmcnt(%d)' % vn)
                    vm = vm[len(vm) - vn:]
            if ln is not None:
                if any(e[2] for e in lg):
                    ln = 0
                ln = min(ln, 15)
                if len(lg) > ln:
                    parts.append('lgkmcnt(%d)' % ln)
                    lg = lg[len(lg) - ln:]
            if parts:
                out.append(Ins('s_waitcnt ' + ' '.join(parts)))

        for i in self.ins:
            if i.kind == 'reset':
                vm, lg = [], []
                out.append(i)
                continue
            if i.kind == 'save':
                saved[i.text] = (list(vm), list(lg))
                out.append(i)
                continue
            if i.kind == 'load':
                vm, lg = list(saved[i.text][0]), list(saved[i.text][1])
                out.append(i)
                continue
            if i.kind == 'waitvm':
                idx = -1
                for n, e in enumerate(vm):
                    if i.tag is None or e[1] == i.tag:
                        idx = n
                if idx >= 0:
                    emit(len(vm) - 1 - idx, None)
                continue
            if i.kind == 'waitlgkm':
                idx = -1
                for n, e in enumerate(lg):
                    if i.tag is None or e[1] == i.tag:
                        idx = n
                if idx >= 0:
                    emit(None, len(lg) - 1 - idx)
                continue
            if i.kind is not None:
                out.append(i)
                continue
            if i.op == 's_waitcnt':
                m = re.search(r'vmcnt\((\d+)\)', i.text)
                if m:
                    n = int(m.group(1))
                    if len(vm) > n:
                        vm = vm[len(vm) - n:]
                m = re.search(r'lgkmcnt\((\d+)\)', i.text)
                if m:
                    n = int(m.group(1))
                    if len(lg) > n:
                        lg = lg[len(lg) - n:]
                out.append(i)
                continue
            regs = set(i.src) | set(i.dst)
            a = need(vm, regs)
            b = need(lg, regs)
            if i.cls == 'vmem' and a >= 0 and need(vm, set(i.src)) < 0:
                a = -1
            if i.cls == 'ds' and b >= 0 and need(lg, set(i.src)) < 0 and not any(e[2] for e in lg):
                b = -1
            emit(len(vm) - 1 - a if a >= 0 else None, len(lg) - 1 - b if b >= 0 else None)
            if i.cls == 'vmem' and len(vm) >= 63:
                emit(62, None)
            out.append(i)
            if i.cls == 'vmem':
                vm.append((set(i.dst), i.tag))
            elif i.cls == 'ds':
                lg.append((set(i.dst), i.tag, False))
            elif i.cls == 'smem':
                lg.append((set(i.dst), i.tag, True))
        return out

    @staticmethod
    def hazard(p, c):
        need = 0
        pd, cs, cd = set(p.dst), set(c.src), set(c.dst)
        if p.cls == 'valu':
            pv = {r for r in pd if r[0] in 'va'}
            ps = {r for r in pd if r[0] == 's'}
            if c.cls == 'mfma' and pv & cs:
                need = max(need, 2)
            if c.cls == 'valu':
                if p.trans and not c.trans and pv & cs:
                    need = max(need, 1)
                if (c.dpp or c.base.startswith('v_permlane')) and pv & cs:
                    need = max(need, 2)
                if c.base in ('v_readfirstlane_b32', 'v_readlane_b32') and pv & cs:
                    need = max(need, 1)
                if ps & cs:
                    need = max(need, 4 if c.base in ('v_readlane_b32', 'v_writelane_b32') else 2)
            if c.cls == 'vmem' and ps & cs:
                need = max(need, 5)
            if c.cls in ('salu', 'smem') and ps & cs:
                need = max(need, 5 if c.op.startswith('s_cbranch_vcc') else 2)
        if p.cls == 'mfma':
            n = p.passes
            if c.cls == 'mfma':
                if pd & set(c.mfma_ab):
                    need = max(need, n + 4 if p.xdl else n + 2)
                if pd & set(c.mfma_c) or pd & cd:
                    same = (p.op == c.op and p.dst == c.mfma_c)
                    if not same:
                        need = max(need, n + 2)
            elif c.cls in ('valu', 'vmem', 'ds'):
                if pd & (cs | cd):
                    need = max(need, n + 4 if p.xdl else n + 2)
                if set(p.mfma_c) & cd:
                    need = max(need, n - 1)
        if p.cls == 'salu' and ('s', 'm0') in pd and c.cls == 'vmem' and getattr(c, 'lds', False):
            need = max(need, 1)
        if p.cls == 'vmem' and p.store_data and set(p.store_data) & cd:
            need = max(need, 2)
        return need

    def _hazards(self, seq):
        out = []
        hist = []
        saved = {}
        for i in seq:
            if i.kind == 'reset':
                hist = []
                continue
            if i.kind == 'save':
                saved[i.text] = list(hist)
                continue
            if i.kind == 'load':
                hist = list(saved[i.text])
                continue
            if i.kind is not None:
                out.append(i)
                continue
            dist = 0
            pad = 0
            for p in reversed(hist):
                h = self.hazard(p, i)
                if h > dist:
                    pad = max(pad, h - dist)
                dist += p.states()
                if dist > 24:
                    break
            while pad > 0:
                n = min(pad, 16)
                nop = Ins('s_nop %d' % (n - 1))
                out.append(nop)
                hist.append(nop)
                pad -= n
            out.append(i)
            hist.append(i)
            if len(hist) > 40:
                hist = hist[-30:]
        return out


def vr(base, n=1, k='v'):
    return '%s%d' % (k, base) if n == 1 else '%s[%d:%d]' % (k, base, base + n - 1)


def R(idx, n=1):
    if idx < 256:
        assert idx + n <= 256
        return vr(idx, n, 'v')
    assert idx + n <= 512
    return vr(idx - 256, n, 'a')


def sr(base, n=1):
    return vr(base, n, 's')
```

```python
import sys, struct
sys.path.insert(0, "work")
from asmlib import *

NAME = "recurrent_scan__linear_attn_block__mixer_token_mlp__prompt"
S, D, F = 2048, 512, 1376
XN_OFF, HT_OFF, PQ_OFF, UG_OFF, KVP_OFF, KVF_OFF = 0x000000, 0x200000, 0x400000, 0x600000, 0x800000, 0x900000
XN_SZ = HT_SZ = PQ_SZ = 0x200000
UG_SZ = 86 * 16 * 1024
KVP_SZ = 0x100000
KVF_SZ = 0x8000
P_X, P_WQKV, P_WO, P_W1, P_B1, P_W2, P_B2, P_OUT, P_DBG, P_WS = 4, 6, 8, 12, 14, 16, 18, 20, 22, 24
S_WAVE = 3
LOG2E = 1.4426950408889634


def fhex(x):
    return '0x%08x' % struct.unpack('<I', struct.pack('<f', x))[0]


class Cfg:
    st = ''
    ld = ''
    wt = ''
    xl = ''


def srd(a, dst, ptr, off, size):
    if off:
        a.I('s_add_u32 s%d, s%d, 0x%x' % (dst, ptr, off))
        a.I('s_addc_u32 s%d, s%d, 0' % (dst + 1, ptr + 1))
    else:
        a.I('s_mov_b32 s%d, s%d' % (dst, ptr))
        a.I('s_mov_b32 s%d, s%d' % (dst + 1, ptr + 1))
    a.I('s_mov_b32 s%d, 0x%x' % (dst + 2, size))
    a.I('s_mov_b32 s%d, 0x20000' % (dst + 3))


def prologue(a, nwg, endlabel):
    a.I('s_cmp_ge_u32 s2, %d' % nwg)
    a.I('s_cbranch_scc1 %s' % endlabel)
    a.I('s_load_dwordx16 s[4:19], s[0:1], 0')
    a.I('s_load_dwordx4 s[20:23], s[0:1], 64')
    a.I('s_load_dwordx2 s[24:25], s[0:1], 80')
    a.I('v_lshrrev_b32 v1, 6, v0')
    a.I('v_readfirstlane_b32 s3, v1')
    a.I('v_and_b32 v1, 63, v0')
    a.wait_lgkm()


def reduce32(a, regs, tmps):
    for ctl in ('quad_perm:[1,0,3,2]', 'quad_perm:[2,3,0,1]', 'row_half_mirror', 'row_mirror'):
        for r in regs:
            a.I('v_add_f32_dpp v%d, v%d, v%d %s row_mask:0xf bank_mask:0xf' % (r, r, r, ctl))
    for r, t in zip(regs, tmps):
        a.I('v_mov_b32 v%d, v%d' % (t, r))
    for r, t in zip(regs, tmps):
        a.I('v_permlane16_swap_b32 v%d, v%d' % (r, t))
    for r, t in zip(regs, tmps):
        a.I('v_add_f32 v%d, v%d, v%d' % (r, r, t))


LN_PITCH = 1088


def seg_ln_load(a, c, sg, X=32):
    srd(a, 28, P_X, 0, S * D * 2)
    a.I('v_lshrrev_b32 v2, 5, v0')
    a.I('v_and_b32 v3, 31, v0')
    a.I('v_lshlrev_b32 v4, 4, v3')
    a.I('v_lshl_add_u32 v5, v2, 10, v4')
    a.I('s_lshl_b32 s52, s%d, 13' % sg)
    a.I('buffer_load_dwordx4 v[%d:%d], v5, s[28:31], s52 offen %s' % (X, X + 3, c.xl))
    a.I('buffer_load_dwordx4 v[%d:%d], v5, s[28:31], s52 offen offset:512 %s' % (X + 4, X + 7, c.xl))


def seg_ln_compute(a, c, sg, lds0, X=32):
    Fv = X + 8
    T = X + 24
    for i in range(8):
        a.I('v_lshlrev_b32 v%d, 16, v%d' % (Fv + 2 * i, X + i))
        a.I('v_and_b32 v%d, 0xffff0000, v%d' % (Fv + 2 * i + 1, X + i))
    a.I('v_pk_add_f32 v[%d:%d], v[%d:%d], v[%d:%d]' % (T, T + 1, Fv, Fv + 1, Fv + 2, Fv + 3))
    a.I('v_pk_add_f32 v[%d:%d], v[%d:%d], v[%d:%d]' % (T + 2, T + 3, Fv + 4, Fv + 5, Fv + 6, Fv + 7))
    for i in range(2):
        a.I('v_pk_add_f32 v[%d:%d], v[%d:%d], v[%d:%d]' % (T, T + 1, T, T + 1, Fv + 8 + 4 * i, Fv + 9 + 4 * i))
        a.I('v_pk_add_f32 v[%d:%d], v[%d:%d], v[%d:%d]' % (T + 2, T + 3, T + 2, T + 3, Fv + 10 + 4 * i, Fv + 11 + 4 * i))
    a.I('v_pk_add_f32 v[%d:%d], v[%d:%d], v[%d:%d]' % (T, T + 1, T, T + 1, T + 2, T + 3))
    a.I('v_add_f32 v%d, v%d, v%d' % (T, T, T + 1))
    reduce32(a, [T], [T + 1])
    a.I('v_mul_f32 v%d, %s, v%d' % (T, fhex(-1.0 / D), T))
    for i in range(8):
        a.I('v_pk_add_f32 v[%d:%d], v[%d:%d], v[%d:%d] op_sel_hi:[1,0]' % (Fv + 2 * i, Fv + 2 * i + 1, Fv + 2 * i, Fv + 2 * i + 1, T, T + 1))
    a.I('v_pk_mul_f32 v[%d:%d], v[%d:%d], v[%d:%d]' % (T, T + 1, Fv, Fv + 1, Fv, Fv + 1))
    a.I('v_pk_mul_f32 v[%d:%d], v[%d:%d], v[%d:%d]' % (T + 2, T + 3, Fv + 2, Fv + 3, Fv + 2, Fv + 3))
    for i in range(2, 8):
        t = T + 2 * (i & 1)
        a.I('v_pk_fma_f32 v[%d:%d], v[%d:%d], v[%d:%d], v[%d:%d]' % (t, t + 1, Fv + 2 * i, Fv + 2 * i + 1, Fv + 2 * i, Fv + 2 * i + 1, t, t + 1))
    a.I('v_pk_add_f32 v[%d:%d], v[%d:%d], v[%d:%d]' % (T, T + 1, T, T + 1, T + 2, T + 3))
    a.I('v_add_f32 v%d, v%d, v%d' % (T, T, T + 1))
    reduce32(a, [T], [T + 1])
    a.I('v_mov_b32 v%d, %s' % (T + 6, fhex(1e-5)))
    a.I('v_fmac_f32 v%d, %s, v%d' % (T + 6, fhex(1.0 / D), T))
    a.I('v_rsq_f32 v%d, v%d' % (T, T + 6))
    a.I('v_mul_u32_u24 v6, %d, v2' % LN_PITCH)
    a.I('v_add_u32 v6, v6, v4')
    for i in range(8):
        a.I('v_pk_mul_f32 v[%d:%d], v[%d:%d], v[%d:%d] op_sel_hi:[1,0]' % (Fv + 2 * i, Fv + 2 * i + 1, Fv + 2 * i, Fv + 2 * i + 1, T, T + 1))
    for i in range(8):
        a.I('v_cvt_pk_bf16_f32 v%d, v%d, v%d' % (X + i, Fv + 2 * i, Fv + 2 * i + 1))
    a.I('ds_write_b128 v6, v[%d:%d] offset:%d' % (X, X + 3, lds0))
    a.I('ds_write_b128 v6, v[%d:%d] offset:%d' % (X + 4, X + 7, lds0 + 512))
    a.I('v_pk_add_f32 v[%d:%d], v[%d:%d], v[%d:%d]' % (T, T + 1, Fv, Fv + 1, Fv + 2, Fv + 3))
    a.I('v_pk_mul_f32 v[%d:%d], v[%d:%d], v[%d:%d]' % (T + 2, T + 3, Fv, Fv + 1, Fv, Fv + 1))
    for i in range(1, 8):
        if i >= 2:
            a.I('v_pk_add_f32 v[%d:%d], v[%d:%d], v[%d:%d]' % (T, T + 1, T, T + 1, Fv + 2 * i, Fv + 2 * i + 1))
        a.I('v_pk_fma_f32 v[%d:%d], v[%d:%d], v[%d:%d], v[%d:%d]' % (T + 2, T + 3, Fv + 2 * i, Fv + 2 * i + 1, Fv + 2 * i, Fv + 2 * i + 1, T + 2, T + 3))
    a.I('v_add_f32 v%d, v%d, v%d' % (T, T, T + 1))
    a.I('v_add_f32 v%d, v%d, v%d' % (T + 2, T + 2, T + 3))
    reduce32(a, [T, T + 2], [T + 1, T + 3])
    a.I('v_mul_f32 v%d, %s, v%d' % (T, fhex(-1.0 / D), T))
    a.I('v_mov_b32 v%d, %s' % (T + 6, fhex(1e-5)))
    a.I('v_fmac_f32 v%d, %s, v%d' % (T + 6, fhex(1.0 / D), T + 2))
    a.I('v_fma_f32 v%d, -v%d, v%d, v%d' % (T + 6, T, T, T + 6))
    a.I('v_rsq_f32 v%d, v%d' % (T + 2, T + 6))
    a.I('v_and_b32 v7, 7, v0')
    a.I('v_lshrrev_b32 v8, 3, v0')
    a.I('v_mul_f32 v%d, v%d, v%d' % (T, T, T + 2))
    for i in range(8):
        a.I('v_pk_fma_f32 v[%d:%d], v[%d:%d], v[%d:%d], v[%d:%d] op_sel_hi:[1,0,0]' % (
            Fv + 2 * i, Fv + 2 * i + 1, Fv + 2 * i, Fv + 2 * i + 1, T + 2, T + 3, T, T + 1))
    for i in range(8):
        a.I('v_cvt_pk_bf16_f32 v%d, v%d, v%d' % (X + i, Fv + 2 * i, Fv + 2 * i + 1))
    HS = lds0 + 8 * LN_PITCH
    a.I('ds_write_b128 v6, v[%d:%d] offset:%d' % (X, X + 3, HS))
    a.I('ds_write_b128 v6, v[%d:%d] offset:%d' % (X + 4, X + 7, HS + 512))
    a.I('v_mul_u32_u24 v9, %d, v7' % LN_PITCH)
    a.I('v_lshl_add_u32 v9, v8, 4, v9')
    a.I('v_lshlrev_b32 v10, 4, v7')
    a.I('v_lshl_add_u32 v10, v8, 9, v10')
    a.I('v_bfe_u32 v11, v0, 2, 2')
    a.I('v_mul_u32_u24 v11, %d, v11' % LN_PITCH)
    a.I('v_and_b32 v12, 0xf0, v0')
    a.I('v_lshl_add_u32 v11, v12, 1, v11')
    a.I('v_and_b32 v12, 3, v0')
    a.I('v_lshl_add_u32 v11, v12, 3, v11')
    a.I('v_lshlrev_b32 v12, 4, v0')
    srd(a, 28, P_WS, XN_OFF, XN_SZ)
    srd(a, 32, P_WS, HT_OFF, HT_SZ)
    a.I('s_lshr_b32 s52, s%d, 2' % sg)
    a.I('s_lshl_b32 s52, s52, 15')
    a.I('s_and_b32 s53, s%d, 3' % sg)
    a.I('s_lshl_b32 s53, s53, 7')
    a.I('s_add_u32 s52, s52, s53')
    a.I('s_add_u32 s53, s52, 16384')
    a.I('s_lshl_b32 s54, s%d, 13' % sg)
    a.I('s_add_u32 s55, s54, 4096')
    a.wait_lgkm()
    a.I('s_barrier')
    a.I('ds_read_b128 v[%d:%d], v9 offset:%d' % (X, X + 3, lds0))
    a.I('ds_read_b128 v[%d:%d], v9 offset:%d' % (X + 4, X + 7, lds0 + 512))
    for j in range(2):
        for jj in range(2):
            a.I('ds_read_b64_tr_b16 v[%d:%d], v11 offset:%d' % (Fv + 4 * j + 2 * jj, Fv + 4 * j + 2 * jj + 1, HS + jj * 4 * LN_PITCH + j * 512))
    a.I('buffer_store_dwordx4 v[%d:%d], v10, s[28:31], s52 offen %s' % (X, X + 3, c.st), tag='lnst')
    a.I('buffer_store_dwordx4 v[%d:%d], v10, s[28:31], s53 offen %s' % (X + 4, X + 7, c.st), tag='lnst')
    a.I('buffer_store_dwordx4 v[%d:%d], v12, s[32:35], s54 offen %s' % (Fv, Fv + 3, c.st), tag='lnst')
    a.I('buffer_store_dwordx4 v[%d:%d], v12, s[32:35], s55 offen %s' % (Fv + 4, Fv + 7, c.st), tag='lnst')


def interleave(a, main, fill):
    n = len(main)
    k = 0
    for i, m in enumerate(main):
        m()
        upto = (len(fill) * (i + 1) + n - 1) // n
        while k < upto:
            fill[k]()
            k += 1


def gelu(a, regs, T):
    k1 = 2.0 * 0.7978845608028654 * LOG2E
    k2 = k1 * 0.044715
    a.I('s_mov_b32 s60, %s' % fhex(-k2))
    a.I('v_mov_b32 v30, %s' % fhex(-k1))
    for i, r in enumerate(regs):
        t = T + 2 * i
        a.I('v_pk_mul_f32 v[%d:%d], v[%d:%d], v[%d:%d]' % (t, t + 1, r, r + 1, r, r + 1))
    for i, r in enumerate(regs):
        t = T + 2 * i
        a.I('v_pk_fma_f32 v[%d:%d], v[%d:%d], s[60:61], v[30:31] op_sel_hi:[1,0,0]' % (t, t + 1, t, t + 1))
    for i, r in enumerate(regs):
        t = T + 2 * i
        a.I('v_pk_mul_f32 v[%d:%d], v[%d:%d], v[%d:%d]' % (t, t + 1, t, t + 1, r, r + 1))
    sigmul(a, regs, T)


def sigmul(a, regs, T):
    for i, r in enumerate(regs):
        t = T + 2 * i
        a.I('v_exp_f32 v%d, v%d' % (t, t))
        a.I('v_exp_f32 v%d, v%d' % (t + 1, t + 1))
    for i, r in enumerate(regs):
        t = T + 2 * i
        a.I('v_pk_add_f32 v[%d:%d], v[%d:%d], 1.0 op_sel_hi:[1,0]' % (t, t + 1, t, t + 1))
    for i, r in enumerate(regs):
        t = T + 2 * i
        a.I('v_rcp_f32 v%d, v%d' % (t, t))
        a.I('v_rcp_f32 v%d, v%d' % (t + 1, t + 1))
    for i, r in enumerate(regs):
        t = T + 2 * i
        a.I('v_pk_mul_f32 v[%d:%d], v[%d:%d], v[%d:%d]' % (r, r + 1, r, r + 1, t, t + 1))


class SegU:
    NS, NP, HD = 13, 21, 10
    ACC, HR, AR = 32, 128, 256
    SRD_W, SRD_H, SRD_O = 36, 40, 44
    S_WOFF, S_HOFF, S_M0 = 56, 57, 58

    def __init__(self, a, c, s_dt, s_ft):
        self.a, self.c, self.s_dt, self.s_ft = a, c, s_dt, s_ft
        self.n_dma = 0
        self.n_tr = 0
        self.n_h = 0

    def setup(self):
        a = self.a
        srd(a, self.SRD_W, P_W1, 0, S * F * 2)
        srd(a, self.SRD_H, P_WS, HT_OFF, HT_SZ)
        for i in range(3):
            a.I('v_add_u32 v16, %d, v1' % (64 * i))
            a.I('v_mul_u32_u24 v17, 0x1556, v16')
            a.I('v_lshrrev_b32 v17, 16, v17')
            a.I('v_mul_u32_u24 v18, 12, v17')
            a.I('v_sub_u32 v16, v16, v18')
            a.I('v_mul_u32_u24 v17, %d, v17' % (F * 2))
            a.I('v_lshl_add_u32 v%d, v16, 4, v17' % (13 + i))
            if i:
                a.I('v_subrev_u32 v%d, %d, v%d' % (13 + i, 1024 * i, 13 + i))
        a.I('s_mul_i32 s%d, s3, %d' % (self.S_WOFF, 512 * F * 2))
        a.I('s_mul_i32 s59, s%d, 192' % self.s_ft)
        a.I('s_add_u32 s%d, s%d, s59' % (self.S_WOFF, self.S_WOFF))
        a.I('s_mul_i32 s%d, s3, 40960' % self.S_M0)

    def setup2(self):
        a = self.a
        a.I('v_lshrrev_b32 v17, 5, v1')
        a.I('v_bfe_u32 v18, v1, 2, 2')
        a.I('v_lshl_add_u32 v17, v17, 3, v18')
        a.I('v_mul_u32_u24 v16, 192, v17')
        a.I('v_bfe_u32 v17, v1, 4, 1')
        a.I('s_lshr_b32 s59, s3, 1')
        a.I('v_xor_b32 v17, s59, v17')
        a.I('v_lshl_add_u32 v16, v17, 5, v16')
        a.I('v_and_b32 v17, 3, v1')
        a.I('v_lshl_add_u32 v16, v17, 3, v16')
        a.I('v_add_u32 v16, s%d, v16' % self.S_M0)
        a.I('v_lshrrev_b32 v18, 5, v1')
        a.I('v_and_b32 v19, 31, v1')
        a.I('v_lshlrev_b32 v19, 4, v19')
        a.I('v_lshl_add_u32 v17, v18, 13, v19')
        a.I('s_and_b32 s59, s3, 1')
        a.I('s_lshl_b32 s59, s59, 9')
        a.I('v_add_u32 v17, s59, v17')
        a.I('v_xor_b32 v18, 512, v17')
        a.I('s_lshl_b32 s%d, s3, 19' % self.S_HOFF)
        a.I('s_lshl_b32 s59, s%d, 10' % self.s_dt)
        a.I('s_add_u32 s%d, s%d, s59' % (self.S_HOFF, self.S_HOFF))

    def bias_load(self):
        a = self.a
        srd(a, self.SRD_O, P_B1, 0, F * 2)
        a.I('s_mul_i32 s59, s%d, 192' % self.s_ft)
        a.I('v_lshlrev_b32 v19, 1, v0')
        a.I('v_mov_b32 v20, 0x7fffff00')
        a.I('v_cmp_gt_u32 vcc, 32, v0')
        a.I('v_cndmask_b32 v19, v20, v19, vcc')
        for fb in range(3):
            a.I('buffer_load_ushort v%d, v19, s[%d:%d], s59 offen offset:%d' % (self.HR + 4 * fb, self.SRD_O, self.SRD_O + 3, 64 * fb))

    def bias_mfma(self):
        a = self.a
        H = self.HR
        for fb in range(3):
            for j in range(1, 4):
                a.I('v_mov_b32 v%d, 0' % (H + 4 * fb + j))
        a.I('v_mov_b32 v%d, 0x3f80' % (H + 12))
        for j in range(1, 4):
            a.I('v_mov_b32 v%d, 0' % (H + 12 + j))
        for fb in range(3):
            for db in range(2):
                acc = self.ACC + 16 * (2 * fb + db)
                a.I('v_mfma_f32_32x32x16_bf16 %s, %s, %s, 0' % (R(acc, 16), R(H + 4 * fb, 4), R(H + 12, 4)))

    def dma_items(self):
        ks = self.n_dma
        self.n_dma += 1
        a = self.a
        out = []

        def first():
            if ks >= self.NS:
                a.wait_lgkm(('utr', ks - self.NS))
            a.I('s_add_u32 m0, s%d, %d' % (self.S_M0, (ks % self.NS) * 3072))
            a.I('buffer_load_dwordx4 v13, s[%d:%d], s%d offen %s lds' % (self.SRD_W, self.SRD_W + 3, self.S_WOFF, self.c.wt), tag=('udma', ks))
        out.append(first)
        out.append(lambda: a.I('buffer_load_dwordx4 v14, s[%d:%d], s%d offen offset:1024 %s lds' % (self.SRD_W, self.SRD_W + 3, self.S_WOFF, self.c.wt), tag=('udma', ks)))

        def last():
            a.I('buffer_load_dwordx4 v15, s[%d:%d], s%d offen offset:2048 %s lds' % (self.SRD_W, self.SRD_W + 3, self.S_WOFF, self.c.wt), tag=('udma', ks))
            a.I('s_add_u32 s%d, s%d, %d' % (self.S_WOFF, self.S_WOFF, 16 * F * 2))
        out.append(last)
        return out

    def tr_items(self):
        ks = self.n_tr
        self.n_tr += 1
        a = self.a
        out = []
        for fb in range(3):
            for jj in range(2):
                def f(fb=fb, jj=jj):
                    if fb == 0 and jj == 0:
                        a.wait_vm(('udma', ks))
                    dst = self.AR + 12 * (ks % self.NP) + 4 * fb + 2 * jj
                    a.I('ds_read_b64_tr_b16 %s, v16 offset:%d' % (R(dst, 2), (ks % self.NS) * 3072 + jj * 768 + fb * 64), tag=('utr', ks))
                out.append(f)
        return out

    def h_items(self):
        ks = self.n_h
        self.n_h += 1
        a = self.a
        dst = self.HR + 8 * (ks % 16)

        def f0():
            a.I('buffer_load_dwordx4 %s, v17, s[%d:%d], s%d offen %s' % (R(dst, 4), self.SRD_H, self.SRD_H + 3, self.S_HOFF, self.c.ld))

        def f1():
            a.I('buffer_load_dwordx4 %s, v18, s[%d:%d], s%d offen %s' % (R(dst + 4, 4), self.SRD_H, self.SRD_H + 3, self.S_HOFF, self.c.ld))
            a.I('s_add_u32 s%d, s%d, 16384' % (self.S_HOFF, self.S_HOFF))
        return [f0, f1]

    def mfma_items(self, ks):
        a = self.a
        out = []
        for db in range(2):
            for fb in range(3):
                acc = self.ACC + 16 * (2 * fb + db)
                A = self.AR + 12 * (ks % self.NP) + 4 * fb
                B = self.HR + 8 * (ks % 16) + 4 * db
                out.append(lambda acc=acc, A=A, B=B: a.I('v_mfma_f32_32x32x16_bf16 %s, %s, %s, %s' % (R(acc, 16), R(A, 4), R(B, 4), R(acc, 16))))
        return out

    def simple_main(self, depth=8):
        for ks in range(depth):
            for f in self.dma_items() + self.h_items():
                f()
        for f in self.tr_items():
            f()
        for ks in range(32):
            fill = []
            if self.n_dma < 32:
                fill += self.dma_items() + self.h_items()
            if self.n_tr < 32:
                fill += self.tr_items()
            interleave(self.a, self.mfma_items(ks), fill)

    def epilogue(self):
        a, c = self.a, self.c
        srd(a, self.SRD_O, P_WS, UG_OFF, UG_SZ)
        OWN, SLOT = 18432, 6144
        a.I('v_lshlrev_b32 v23, 4, v1')
        for x in range(1, 4):
            a.I('s_xor_b32 s59, s3, %d' % x)
            a.I('s_mul_i32 s59, s59, %d' % OWN)
            a.I('v_add_u32 v%d, s59, v23' % (18 + x))
        a.I('s_mul_i32 s59, s3, %d' % OWN)
        a.I('v_add_u32 v22, s59, v23')
        a.I('s_mul_i32 s62, s%d, 6' % self.s_ft)
        a.I('s_lshr_b32 s59, s3, 1')
        a.I('s_add_u32 s62, s62, s59')
        a.I('s_lshl_b32 s62, s62, 4')
        a.I('s_lshl_b32 s59, s%d, 1' % self.s_dt)
        a.I('s_add_u32 s62, s62, s59')
        a.I('s_and_b32 s59, s3, 1')
        a.I('s_add_u32 s62, s62, s59')
        a.I('s_lshl_b32 s62, s62, 10')
        a.I('s_add_u32 s63, s62, 32768')
        a.I('s_add_u32 s64, s62, 65536')
        a.wait_lgkm()
        a.I('s_barrier')
        for x in (2, 1, 3):
            db, j = x & 1, x >> 1
            for fb in range(3):
                for q in range(2):
                    src = self.ACC + 16 * (2 * fb + db) + 8 * j + 4 * q
                    a.I('ds_write_b128 v%d, %s offset:%d' % (18 + x, R(src, 4), (x - 1) * SLOT + fb * 2048 + q * 1024))
        a.wait_lgkm()
        a.I('s_barrier')
        T = self.HR
        for fb in range(3):
            for x in range(3):
                for q in range(2):
                    a.I('ds_read_b128 %s, v22 offset:%d' % (R(T + 24 * fb + 8 * x + 4 * q, 4), x * SLOT + fb * 2048 + q * 1024))
        for fb in range(3):
            own = self.ACC + 32 * fb
            t = T + 24 * fb
            for x in range(3):
                for p in range(4):
                    a.I('v_pk_add_f32 v[%d:%d], v[%d:%d], v[%d:%d]' % (own + 2 * p, own + 2 * p + 1, own + 2 * p, own + 2 * p + 1, t + 8 * x + 2 * p, t + 8 * x + 2 * p + 1))
            gelu(a, [own + 2 * p for p in range(4)], t)
            for p in range(4):
                a.I('v_cvt_pk_bf16_f32 v%d, v%d, v%d' % (t + 8 + p, own + 2 * p, own + 2 * p + 1))
            a.I('buffer_store_dwordx4 v[%d:%d], v23, s[%d:%d], s%d offen %s' % (t + 8, t + 11, self.SRD_O, self.SRD_O + 3, 62 + fb, c.st), tag='ust')


def swz_dma_offsets(a, dst, pitch):
    a.I('v_lshrrev_b32 v24, 3, v1')
    a.I('v_bfe_u32 v25, v1, 4, 1')
    a.I('v_lshlrev_b32 v25, 2, v25')
    a.I('v_and_b32 v26, 7, v1')
    a.I('v_xor_b32 v25, v25, v26')
    a.I('v_mul_u32_u24 v24, %d, v24' % pitch)
    a.I('v_lshl_add_u32 v%d, v25, 4, v24' % dst)
    for i in range(1, 4):
        a.I('v_add_u32 v%d, %d, v%d' % (dst + i, 8 * pitch - 1024, dst + i - 1))


def swz_tr_base(a, dst, hf_rows):
    a.I('v_lshrrev_b32 v24, 5, v1')
    a.I('v_bfe_u32 v25, v1, 2, 2')
    a.I('v_mul_u32_u24 v24, %d, v24' % hf_rows)
    a.I('v_add_u32 v24, v24, v25')
    a.I('v_lshlrev_b32 v24, 7, v24')
    a.I('v_bfe_u32 v25, v1, 3, 1')
    a.I('v_lshl_add_u32 v24, v25, 6, v24')
    a.I('v_bfe_u32 v25, v1, 4, 1')
    a.I('v_lshl_add_u32 v24, v25, 5, v24')
    a.I('v_and_b32 v25, 3, v1')
    a.I('v_lshl_add_u32 v%d, v25, 3, v24' % dst)
    a.I('v_xor_b32 v%d, 64, v%d' % (dst + 1, dst))


def phi_items(a, regs, T):
    out = []
    for i, r in enumerate(regs):
        t = T + 2 * i
        out.append(lambda r=r, t=t: a.I('v_pk_mul_f32 v[%d:%d], v[%d:%d], s[60:61] op_sel_hi:[1,0]' % (t, t + 1, r, r + 1)))
    for i, r in enumerate(regs):
        t = T + 2 * i
        out.append(lambda r=r, t=t: a.I('v_exp_f32_e64 v%d, v%d clamp' % (t, t)))
        out.append(lambda r=r, t=t: a.I('v_max_f32 v%d, 0, v%d' % (r, r)))
        out.append(lambda r=r, t=t: a.I('v_exp_f32_e64 v%d, v%d clamp' % (t + 1, t + 1)))
        out.append(lambda r=r, t=t: a.I('v_max_f32 v%d, 0, v%d' % (r + 1, r + 1)))
    for i, r in enumerate(regs):
        t = T + 2 * i
        out.append(lambda r=r, t=t: a.I('v_pk_add_f32 v[%d:%d], v[%d:%d], v[%d:%d]' % (r, r + 1, r, r + 1, t, t + 1)))
    for i, r in enumerate(regs):
        out.append(lambda r=r: a.I('v_pk_add_f32 v[%d:%d], v[%d:%d], v[30:31]' % (r, r + 1, r, r + 1)))
    return out


class SegQKV:
    SRD_W, SRD_X, SRD_O = 36, 40, 44
    XR = 256
    QP = 384
    AK, AV, AQ = 32, 64, 96
    WF = 128
    KV, Z = 160, 176
    T = 192
    LK, LV, LQ = 0, 65536, 131072

    def __init__(self, a, c, s_tt, s_hg):
        self.a, self.c, self.s_tt, self.s_hg = a, c, s_tt, s_hg

    def setup(self):
        a = self.a
        srd(a, self.SRD_W, P_WQKV, 0, D * 3 * D * 2)
        srd(a, self.SRD_X, P_WS, XN_OFF, XN_SZ)
        swz_dma_offsets(a, 13, 3072)
        a.I('s_lshl_b32 s56, s%d, 7' % self.s_hg)
        a.I('s_mul_i32 s57, s3, %d' % (32 * 3072))
        a.I('s_add_u32 s56, s56, s57')
        a.I('s_lshl_b32 s58, s3, 12')

    def dma(self, sec, k0, lds, tag):
        a = self.a
        a.I('s_add_u32 m0, s58, %d' % lds)
        a.I('s_add_u32 s57, s56, %d' % (k0 * 3072 + sec * 1024))
        for i in range(4):
            a.I('buffer_load_dwordx4 v%d, s[%d:%d], s57 offen offset:%d %s lds' % (13 + i, self.SRD_W, self.SRD_W + 3, 1024 * i, self.c.wt), tag=tag)

    def setup2(self):
        a = self.a
        swz_tr_base(a, 17, 8)
        a.I('v_add_u32 v19, 0x10000, v17')
        a.I('v_add_u32 v20, 0x10000, v18')
        a.I('v_add_u32 v21, 0x20000, v17')
        a.I('v_add_u32 v22, 0x20000, v18')
        a.I('v_lshlrev_b32 v23, 4, v1')

    def xload(self):
        a = self.a
        a.I('s_lshl_b32 s59, s%d, 2' % self.s_tt)
        a.I('s_add_u32 s59, s59, s3')
        a.I('s_lshl_b32 s59, s59, 15')
        for ks in range(32):
            a.I('buffer_load_dwordx4 %s, v23, s[%d:%d], s59 offen offset:%d %s' % (R(self.XR + 4 * ks, 4), self.SRD_X, self.SRD_X + 3, (ks & 3) * 1024, self.c.ld))
            if ks & 3 == 3 and ks < 31:
                a.I('s_add_u32 s59, s59, 4096')

    def park_q(self):
        a = self.a
        for ks in range(16):
            for cb in range(2):
                for jj in range(2):
                    a.I('ds_read_b64_tr_b16 %s, v%d offset:%d' % (R(self.QP + 8 * ks + 4 * cb + 2 * jj, 2), 21 + cb, ks * 2048 + jj * 512))

    def kv_reads(self, ks):
        a = self.a
        out = []
        for sec in range(2):
            for cb in range(2):
                for jj in range(2):
                    dst = self.WF + 16 * (ks & 1) + 8 * sec + 4 * cb + 2 * jj
                    out.append(lambda dst=dst, sec=sec, cb=cb, jj=jj: a.I('ds_read_b64_tr_b16 %s, v%d offset:%d' % (R(dst, 2), 17 + 2 * sec + cb, ks * 2048 + jj * 512)))
        return out

    def kv_mfma(self, ks):
        a = self.a
        out = []
        for sec in range(2):
            for cb in range(2):
                acc = (self.AK, self.AV)[sec] + 16 * cb
                w = self.WF + 16 * (ks & 1) + 8 * sec + 4 * cb
                out.append(lambda acc=acc, w=w: a.I('v_mfma_f32_32x32x16_bf16 %s, %s, %s, %s' % (
                    R(acc, 16), R(self.XR + 4 * ks, 4), R(w, 4), R(acc, 16) if ks else '0')))
        return out

    def kv_pass(self):
        for f in self.kv_reads(0):
            f()
        for ks in range(32):
            interleave(self.a, self.kv_mfma(ks), self.kv_reads(ks + 1) if ks < 31 else [])

    def consts(self):
        a = self.a
        a.I('s_mov_b32 s60, %s' % fhex(LOG2E))
        a.I('v_mov_b32 v30, %s' % fhex(1e-6))
        a.I('v_mov_b32 v31, %s' % fhex(1e-6))

    def kv_epilogue(self):
        a, c = self.a, self.c
        T = self.T
        ONE = T + 48
        for j in range(4):
            a.I('v_mov_b32 v%d, 0x3f803f80' % (ONE + j))
        a.I('v_and_b32 v24, 16, v1')
        a.I('v_cmp_eq_u32 s[62:63], 0, v24')
        a.I('s_lshl_b32 s59, s3, 13')
        a.I('v_add_u32 v24, s59, v23')
        a.I('s_lshl_b32 s59, s3, 11')
        a.I('v_add_u32 v25, s59, v23')
        first = True
        for cb in range(2):
            k, v = self.AK + 16 * cb, self.AV + 16 * cb
            for f in phi_items(a, [k + 2 * i for i in range(8)], T):
                f()
            for i in range(8):
                a.I('v_cvt_pk_bf16_f32 v%d, v%d, v%d' % (T + 16 + i, k + 2 * i, k + 2 * i + 1))
                a.I('v_cvt_pk_bf16_f32 v%d, v%d, v%d' % (T + 24 + i, v + 2 * i, v + 2 * i + 1))
            for j in range(2):
                a.I('v_mfma_f32_32x32x16_bf16 %s, %s, %s, %s' % (R(self.KV, 16), R(T + 16 + 4 * j, 4), R(T + 24 + 4 * j, 4), R(self.KV, 16) if j else '0'))
            for j in range(2):
                a.I('v_mfma_f32_32x32x16_bf16 %s, %s, %s, %s' % (R(self.Z, 16), R(T + 16 + 4 * j, 4), R(ONE, 4), R(self.Z, 16) if j else '0'))
            for i in range(8):
                a.I('v_cndmask_b32 v%d, v%d, v%d, s[62:63]' % (T + 32 + i, self.Z + i, self.KV + i))
            for i in range(8, 16):
                a.I('v_cndmask_b32 v%d, v%d, v%d, s[62:63]' % (T + 32 + i, self.KV + i, self.Z + i))
            if first:
                a.wait_lgkm()
                a.I('s_barrier')
                first = False
            for i in range(4):
                a.I('ds_write_b128 v24, v[%d:%d] offset:%d' % (T + 32 + 4 * i, T + 35 + 4 * i, cb * 4096 + i * 1024))
        a.wait_lgkm()
        a.I('s_barrier')
        for w in range(4):
            for q in range(2):
                a.I('ds_read_b128 v[%d:%d], v25 offset:%d' % (T + 8 * w + 4 * q, T + 8 * w + 4 * q + 3, w * 8192 + q * 1024))
        srd(a, self.SRD_O, P_WS, KVP_OFF, KVP_SZ)
        a.I('s_lshl_b32 s59, s%d, 3' % self.s_tt)
        a.I('s_add_u32 s59, s59, s%d' % self.s_hg)
        a.I('s_lshl_b32 s59, s59, 2')
        a.I('s_add_u32 s59, s59, s3')
        a.I('s_lshl_b32 s59, s59, 11')
        for w in range(1, 4):
            for p in range(4):
                a.I('v_pk_add_f32 v[%d:%d], v[%d:%d], v[%d:%d]' % (T + 2 * p, T + 2 * p + 1, T + 2 * p, T + 2 * p + 1, T + 8 * w + 2 * p, T + 8 * w + 2 * p + 1))
        for q in range(2):
            a.I('buffer_store_dwordx4 v[%d:%d], v23, s[%d:%d], s59 offen offset:%d %s' % (T + 4 * q, T + 4 * q + 3, self.SRD_O, self.SRD_O + 3, q * 1024, c.st), tag='kvst')

    def q_pass(self):
        a = self.a

        def reads(ks):
            out = []
            for cb in range(2):
                for jj in range(2):
                    dst = self.WF + 8 * (ks & 3) + 4 * cb + 2 * jj
                    out.append(lambda dst=dst, cb=cb, jj=jj: a.I('ds_read_b64_tr_b16 %s, v%d offset:%d' % (R(dst, 2), 21 + cb, (ks - 16) * 2048 + jj * 512)))
            return out
        for ks in range(32):
            main = []
            for cb in range(2):
                acc = self.AQ + 16 * cb
                w = self.QP + 8 * ks + 4 * cb if ks < 16 else self.WF + 8 * (ks & 3) + 4 * cb
                main.append(lambda acc=acc, w=w, ks=ks: a.I('v_mfma_f32_32x32x16_bf16 %s, %s, %s, %s' % (
                    R(acc, 16), R(w, 4), R(self.XR + 4 * ks, 4), R(acc, 16) if ks else '0')))
            interleave(a, main, reads(ks + 2) if 16 <= ks + 2 < 32 else [])

    def q_epilogue(self):
        a, c = self.a, self.c
        T = self.T + 16
        srd(a, self.SRD_O, P_WS, PQ_OFF, PQ_SZ)
        a.I('s_lshl_b32 s59, s%d, 2' % self.s_tt)
        a.I('s_add_u32 s59, s59, s3')
        a.I('s_lshl_b32 s59, s59, 3')
        a.I('s_add_u32 s59, s59, s%d' % self.s_hg)
        a.I('s_lshl_b32 s59, s59, 12')
        for cb in range(2):
            q = self.AQ + 16 * cb
            for f in phi_items(a, [q + 2 * i for i in range(8)], T):
                f()
            for i in range(8):
                a.I('v_cvt_pk_bf16_f32 v%d, v%d, v%d' % (T + 16 + 8 * cb + i, q + 2 * i, q + 2 * i + 1))
            for j in range(2):
                a.I('buffer_store_dwordx4 v[%d:%d], v23, s[%d:%d], s59 offen offset:%d %s' % (
                    T + 16 + 8 * cb + 4 * j, T + 19 + 8 * cb + 4 * j, self.SRD_O, self.SRD_O + 3, (2 * cb + j) * 1024, c.st), tag='pqst')


def seg_red(a, c, s_hg):
    srd(a, 36, P_WS, KVP_OFF, KVP_SZ)
    srd(a, 40, P_WS, KVF_OFF, KVF_SZ)
    a.I('v_lshlrev_b32 v23, 4, v1')
    a.I('s_lshl_b32 s56, s%d, 2' % s_hg)
    a.I('s_add_u32 s56, s56, s3')
    a.I('s_lshl_b32 s57, s56, 11')
    a.I('s_lshl_b32 s56, s56, 10')
    for t in range(16):
        for q in range(2):
            a.I('buffer_load_dwordx4 v[%d:%d], v23, s[36:39], s57 offen offset:%d %s' % (32 + 8 * t + 4 * q, 35 + 8 * t + 4 * q, q * 1024, c.ld))
        if t < 15:
            a.I('s_add_u32 s57, s57, 65536')
    for t in range(1, 16):
        for p in range(4):
            a.I('v_pk_add_f32 v[%d:%d], v[%d:%d], v[%d:%d]' % (32 + 2 * p, 33 + 2 * p, 32 + 2 * p, 33 + 2 * p, 32 + 8 * t + 2 * p, 33 + 8 * t + 2 * p))
    for p in range(4):
        a.I('v_cvt_pk_bf16_f32 v%d, v%d, v%d' % (40 + p, 32 + 2 * p, 33 + 2 * p))
    a.I('buffer_store_dwordx4 v[40:43], v23, s[40:43], s56 offen %s' % c.st, tag='redst')


class SegYS:
    SRD_W2, SRD_WO, SRD_A, SRD_B, SRD_C = 36, 40, 44, 48, 28
    W2R = 256
    WOR = 432
    ACC = 32
    PQR = 96
    KVR = 160
    T = 192
    SF = 232
    XR = 248
    NRING = 10

    def __init__(self, a, c, s_tt, s_dt):
        self.a, self.c, self.s_tt, self.s_dt = a, c, s_tt, s_dt
        self.pieces = [('wo', i) for i in range(4)] + [('w2', i) for i in range(11)]
        self.n_dma = 0
        self.n_tr = 0

    def setup(self):
        a = self.a
        srd(a, self.SRD_W2, P_W2, 0, F * S * 2)
        srd(a, self.SRD_WO, P_WO, 0, D * D * 2)
        swz_dma_offsets(a, 2, 4096)
        swz_dma_offsets(a, 6, 1024)
        a.I('s_mul_i32 s56, s3, %d' % (352 * 4096))
        a.I('s_lshl_b32 s57, s%d, 7' % self.s_tt)
        a.I('s_add_u32 s56, s56, s57')
        a.I('s_lshl_b32 s57, s3, 17')
        a.I('s_lshl_b32 s58, s%d, 7' % self.s_dt)
        a.I('s_add_u32 s57, s57, s58')
        a.I('s_mul_i32 s58, s3, 40960')
        swz_tr_base(a, 10, 4)
        a.I('v_add_u32 v10, s58, v10')
        a.I('v_add_u32 v11, s58, v11')
        a.I('v_lshlrev_b32 v23, 4, v1')

    def dma_piece(self):
        a = self.a
        n = self.n_dma
        self.n_dma += 1
        kind, i = self.pieces[n]
        if n >= self.NRING:
            a.wait_lgkm(('ytr', n - self.NRING))
        a.I('s_add_u32 m0, s58, %d' % ((n % self.NRING) * 4096))
        for j in range(4):
            if kind == 'w2':
                a.I('buffer_load_dwordx4 v%d, s[%d:%d], s56 offen offset:%d %s lds' % (2 + j, self.SRD_W2, self.SRD_W2 + 3, 1024 * j, self.c.wt), tag=('ydma', n))
            else:
                a.I('buffer_load_dwordx4 v%d, s[%d:%d], s57 offen offset:%d %s lds' % (6 + j, self.SRD_WO, self.SRD_WO + 3, 1024 * j, self.c.wt), tag=('ydma', n))
        if kind == 'w2':
            a.I('s_add_u32 s56, s56, %d' % (32 * 4096))
        else:
            a.I('s_add_u32 s57, s57, %d' % (32 * 1024))

    def tr_piece(self):
        a = self.a
        n = self.n_tr
        self.n_tr += 1
        kind, i = self.pieces[n]
        a.wait_vm(('ydma', n))
        base = (self.W2R if kind == 'w2' else self.WOR) + 16 * i
        for ks in range(2):
            for cb in range(2):
                for jj in range(2):
                    a.I('ds_read_b64_tr_b16 %s, v%d offset:%d' % (R(base + 8 * ks + 4 * cb + 2 * jj, 2), 10 + cb, (n % self.NRING) * 4096 + ks * 2048 + jj * 1024), tag=('ytr', n))

    def misc_loads(self):
        a = self.a
        srd(a, self.SRD_C, P_X, 0, S * D * 2)
        srd(a, self.SRD_A, P_B2, 0, S * 2)
        a.I('v_lshrrev_b32 v24, 3, v0')
        a.I('v_and_b32 v25, 7, v0')
        a.I('v_lshlrev_b32 v25, 4, v25')
        a.I('v_lshl_add_u32 v12, v24, 10, v25')
        a.I('v_lshlrev_b32 v24, 1, v24')
        a.I('s_lshl_b32 s64, s%d, 16' % self.s_tt)
        a.I('s_lshl_b32 s59, s%d, 7' % self.s_dt)
        a.I('s_add_u32 s64, s64, s59')
        a.I('s_add_u32 s65, s64, 32768')
        a.I('s_lshl_b32 s59, s%d, 7' % self.s_tt)
        a.I('buffer_load_dwordx4 v[%d:%d], v12, s[%d:%d], s64 offen' % (self.XR, self.XR + 3, self.SRD_C, self.SRD_C + 3))
        a.I('buffer_load_dwordx4 v[%d:%d], v12, s[%d:%d], s65 offen' % (self.XR + 4, self.XR + 7, self.SRD_C, self.SRD_C + 3))
        a.I('buffer_load_ushort v28, v24, s[%d:%d], s59 offen' % (self.SRD_A, self.SRD_A + 3))
        a.I('buffer_load_ushort v29, v24, s[%d:%d], s59 offen offset:64' % (self.SRD_A, self.SRD_A + 3))

    def red_addr(self):
        a = self.a
        a.I('v_lshrrev_b32 v24, 5, v1')
        a.I('v_and_b32 v25, 31, v1')
        a.I('v_lshlrev_b32 v25, 7, v25')
        a.I('v_lshl_add_u32 v24, v24, 13, v25')
        a.I('v_and_b32 v25, 7, v1')
        a.I('v_lshl_add_u32 v24, v25, 4, v24')
        a.I('s_lshl_b32 s59, s3, 14')
        a.I('v_add_u32 v13, s59, v24')
        for d8 in range(1, 8):
            a.I('v_xor_b32 v%d, %d, v13' % (13 + d8, 16 * d8))
        a.I('v_lshrrev_b32 v24, 3, v0')
        a.I('v_xor_b32 v25, v24, v0')
        a.I('v_and_b32 v25, 7, v25')
        a.I('v_lshlrev_b32 v25, 4, v25')
        a.I('v_lshl_add_u32 v21, v24, 7, v25')

    def pq_loads(self):
        a = self.a
        srd(a, self.SRD_A, P_WS, PQ_OFF, PQ_SZ)
        a.I('s_lshl_b32 s59, s%d, 16' % self.s_tt)
        a.I('s_lshl_b32 s62, s3, 13')
        a.I('s_add_u32 s59, s59, s62')
        a.I('s_add_u32 s62, s59, 32768')
        for hq in range(2):
            for h in range(4):
                for tb in range(2):
                    a.I('buffer_load_dwordx4 %s, v23, s[%d:%d], s%d offen offset:%d %s' % (
                        R(self.PQR + 8 * (4 * hq + h) + 4 * tb, 4), self.SRD_A, self.SRD_A + 3, (59, 62)[tb], h * 1024, self.c.ld))
            if hq == 0:
                a.I('s_add_u32 s59, s59, 4096')
                a.I('s_add_u32 s62, s62, 4096')

    def kv_loads(self):
        a = self.a
        srd(a, self.SRD_B, P_WS, KVF_OFF, KVF_SZ)
        a.I('s_lshl_b32 s59, s3, 13')
        for h in range(8):
            a.I('buffer_load_dwordx4 %s, v23, s[%d:%d], s59 offen offset:%d %s' % (R(self.KVR + 4 * h, 4), self.SRD_B, self.SRD_B + 3, (h & 3) * 1024, self.c.ld))
            if h == 3:
                a.I('s_add_u32 s59, s59, 4096')

    def s_compute(self):
        a = self.a
        T = self.T
        OF = T + 32

        def omfma(n):
            h, tb = n >> 1, n & 1
            a.I('v_mfma_f32_32x32x16_bf16 %s, %s, %s, 0' % (R(T + 16 * (n & 1), 16), R(self.KVR + 4 * h, 4), R(self.PQR + 8 * h + 4 * tb, 4)))

        def ovalu(n):
            h, tb = n >> 1, n & 1
            t = T + 16 * (n & 1)
            num, den = (t, t + 8) if h % 2 == 0 else (t + 8, t)
            out = [lambda: a.I('v_add_f32 v%d, %s, v%d' % (den, fhex(1e-6), den)),
                   lambda: a.I('v_rcp_f32 v%d, v%d' % (den, den))]
            for p in range(4):
                out.append(lambda p=p: a.I('v_pk_mul_f32 v[%d:%d], v[%d:%d], v[%d:%d] op_sel_hi:[1,0]' % (num + 2 * p, num + 2 * p + 1, num + 2 * p, num + 2 * p + 1, den, den + 1)))
            for p in range(4):
                out.append(lambda p=p: a.I('v_cvt_pk_bf16_f32 v%d, v%d, v%d' % (OF + 4 * (n & 1) + p, num + 2 * p, num + 2 * p + 1)))
            return out

        def smfma(n):
            h, tb = n >> 1, n & 1
            out = []
            for db in range(2):
                acc = self.ACC + 16 * (2 * tb + db)
                out.append(lambda acc=acc, db=db: a.I('v_mfma_f32_32x32x16_bf16 %s, %s, %s, %s' % (
                    R(acc, 16), R(self.WOR + 8 * h + 4 * db, 4), R(OF + 4 * (n & 1), 4), R(acc, 16) if h else '0')))
            return out
        omfma(0)
        for n in range(16):
            main = []
            if n + 1 < 16:
                main.append(lambda n=n: omfma(n + 1))
            if n >= 1:
                main += smfma(n - 1)
            for m in main:
                m()
            for f in ovalu(n):
                f()
        for m in smfma(15):
            m()

    def reduce(self, dst):
        a = self.a
        for tb in range(2):
            for db in range(2):
                for q in range(4):
                    a.I('ds_write_b128 v%d, %s offset:%d' % (13 + 4 * db + q, R(self.ACC + 16 * (2 * tb + db) + 4 * q, 4), tb * 4096))
        a.wait_lgkm()
        a.I('s_barrier')
        T = self.ACC
        for j in range(2):
            for w in range(4):
                for p in range(2):
                    a.I('ds_read_b128 %s, v21 offset:%d' % (R(T + 32 * j + 8 * w + 4 * p, 4), w * 16384 + p * 8192 + j * 4096))
        for j in range(2):
            t = T + 32 * j
            for p in range(4):
                a.I('v_pk_add_f32 v[%d:%d], v[%d:%d], v[%d:%d]' % (t + 2 * p, t + 2 * p + 1, t + 2 * p, t + 2 * p + 1, t + 8 + 2 * p, t + 9 + 2 * p))
            for p in range(4):
                a.I('v_pk_add_f32 v[%d:%d], v[%d:%d], v[%d:%d]' % (t + 16 + 2 * p, t + 17 + 2 * p, t + 16 + 2 * p, t + 17 + 2 * p, t + 24 + 2 * p, t + 25 + 2 * p))
            for p in range(4):
                a.I('v_pk_add_f32 v[%d:%d], v[%d:%d], v[%d:%d]' % (dst + 8 * j + 2 * p, dst + 8 * j + 2 * p + 1, t + 2 * p, t + 2 * p + 1, t + 16 + 2 * p, t + 17 + 2 * p))

    def ug_reg(self, ks):
        if ks < 2:
            return 496 + 8 * ks
        if ks < 14:
            return self.PQR + 8 * (ks - 2)
        return self.WOR + 8 * (ks - 14)

    def ug_setup(self):
        a = self.a
        srd(a, self.SRD_B, P_WS, UG_OFF, UG_SZ)
        a.I('s_mul_i32 s63, s3, %d' % (22 * 16384))
        a.I('s_lshl_b32 s59, s%d, 11' % self.s_dt)
        a.I('s_add_u32 s63, s63, s59')

    def ug_load(self, ks):
        a = self.a
        for db in range(2):
            a.I('buffer_load_dwordx4 %s, v23, s[%d:%d], s63 offen offset:%d %s' % (R(self.ug_reg(ks) + 4 * db, 4), self.SRD_B, self.SRD_B + 3, db * 1024, self.c.ld))
        if ks < 21:
            a.I('s_add_u32 s63, s63, 16384')

    def y_compute(self):
        a = self.a
        for ks in range(22):
            for db in range(2):
                for tb in range(2):
                    acc = self.ACC + 16 * (2 * tb + db)
                    a.I('v_mfma_f32_32x32x16_bf16 %s, %s, %s, %s' % (R(acc, 16), R(self.ug_reg(ks) + 4 * db, 4), R(self.W2R + 8 * ks + 4 * tb, 4), R(acc, 16) if ks else '0'))

    def final(self):
        a = self.a
        Y = self.T
        T = self.T + 16
        srd(a, self.SRD_C, P_OUT, 0, S * D * 2)
        a.I('s_mov_b32 s60, %s' % fhex(-LOG2E))
        a.I('v_lshlrev_b32 v26, 16, v28')
        a.I('v_lshlrev_b32 v28, 16, v29')
        for j in range(2):
            y = Y + 8 * j
            b = (26, 28)[j]
            for p in range(4):
                a.I('v_pk_add_f32 v[%d:%d], v[%d:%d], v[%d:%d] op_sel_hi:[1,0]' % (y + 2 * p, y + 2 * p + 1, y + 2 * p, y + 2 * p + 1, b, b + 1))
            for p in range(4):
                a.I('v_pk_mul_f32 v[%d:%d], v[%d:%d], s[60:61] op_sel_hi:[1,0]' % (T + 2 * p, T + 2 * p + 1, y + 2 * p, y + 2 * p + 1))
            sigmul(a, [y + 2 * p for p in range(4)], T)
            for p in range(4):
                a.I('v_lshlrev_b32 v%d, 16, v%d' % (T + 2 * p, self.XR + 4 * j + p))
                a.I('v_and_b32 v%d, 0xffff0000, v%d' % (T + 2 * p + 1, self.XR + 4 * j + p))
            for p in range(4):
                a.I('v_pk_fma_f32 v[%d:%d], v[%d:%d], v[%d:%d], v[%d:%d]' % (y + 2 * p, y + 2 * p + 1, y + 2 * p, y + 2 * p + 1,
                                                                            self.SF + 8 * j + 2 * p, self.SF + 8 * j + 2 * p + 1, T + 2 * p, T + 2 * p + 1))
            for p in range(4):
                a.I('v_cvt_pk_bf16_f32 v%d, v%d, v%d' % (self.XR + 4 * j + p, y + 2 * p, y + 2 * p + 1))
            a.I('buffer_store_dwordx4 v[%d:%d], v12, s[%d:%d], s%d offen' % (self.XR + 4 * j, self.XR + 4 * j + 3, self.SRD_C, self.SRD_C + 3, 64 + j))


def kd(name, vgpr=512, acc=256):
    return """.amdhsa_kernel %s
  .amdhsa_next_free_vgpr %d
  .amdhsa_next_free_sgpr 96
  .amdhsa_accum_offset %d
  .amdhsa_group_segment_fixed_size 0
  .amdhsa_kernarg_size 88
  .amdhsa_user_sgpr_count 2
  .amdhsa_user_sgpr_kernarg_segment_ptr 1
  .amdhsa_system_sgpr_workgroup_id_x 1
  .amdhsa_float_denorm_mode_32 3
.end_amdhsa_kernel
""" % (name, vgpr, acc)


def header():
    ref = open('cdna_kernels/%s.s.ref' % NAME).read().split('\n')
    return '\n'.join(l for l in ref if l.startswith(';   offset') or l.startswith('; Kernarg')) + '\n'


def role_ids(a):
    a.I('s_and_b32 s66, s2, 1')
    a.I('s_bfe_u32 s67, s2, 0x20001')
    a.I('s_lshr_b32 s68, s2, 3')


def k_ln(c):
    a = Asm()
    prologue(a, 256, 'L_ln_end')
    seg_ln_load(a, c, 2)
    seg_ln_compute(a, c, 2, 0)
    a.label('L_ln_end')
    a.I('s_endpgm')
    return a.finalize()


def k_mid(c):
    a = Asm()
    prologue(a, 256, 'L_mid_end')
    role_ids(a)
    a.I('s_and_b32 s69, s68, 3')
    a.I('s_lshl2_add_u32 s69, s66, s69')
    a.I('s_bfe_u32 s70, s68, 0x20002')
    a.I('s_lshl2_add_u32 s70, s67, s70')
    a.I('s_cmp_lt_u32 s68, 16')
    a.I('s_cbranch_scc1 L_qkv')
    a.I('s_cmp_eq_u32 s70, 15')
    a.I('s_cbranch_scc1 L_mid_end')
    u = SegU(a, c, 69, 70)
    u.setup()
    u.setup2()
    u.bias_load()
    u.bias_mfma()
    u.simple_main()
    u.epilogue()
    a.I('s_endpgm')
    a.reset()
    a.label('L_qkv')
    q = SegQKV(a, c, 70, 69)
    q.setup()
    for i in range(2):
        q.dma(0, 128 * i, q.LQ + 16384 * i, 'q0')
    for i in range(4):
        q.dma(1, 128 * i, q.LK + 16384 * i, 'kv')
        q.dma(2, 128 * i, q.LV + 16384 * i, 'kv')
    q.setup2()
    q.consts()
    a.wait_vm('q0')
    a.I('s_barrier')
    q.park_q()
    a.wait_lgkm()
    a.I('s_barrier')
    for i in range(2):
        q.dma(0, 256 + 128 * i, q.LQ + 16384 * i, 'q1')
    q.xload()
    a.wait_vm('q1')
    a.I('s_barrier')
    q.kv_pass()
    q.kv_epilogue()
    q.q_pass()
    q.q_epilogue()
    a.label('L_mid_end')
    a.I('s_endpgm')
    return a.finalize()


def k_red(c):
    a = Asm()
    prologue(a, 8, 'L_red_end')
    seg_red(a, c, 2)
    a.label('L_red_end')
    a.I('s_endpgm')
    return a.finalize()


def k_ys(c):
    a = Asm()
    prologue(a, 256, 'L_ys_end')
    role_ids(a)
    a.I('s_and_b32 s69, s68, 3')
    a.I('s_lshl2_add_u32 s69, s66, s69')
    a.I('s_lshr_b32 s70, s68, 2')
    a.I('s_lshl3_add_u32 s70, s67, s70')
    y = SegYS(a, c, 70, 69)
    y.setup()
    for i in range(4):
        y.dma_piece()
    y.kv_loads()
    y.pq_loads()
    for i in range(5):
        y.dma_piece()
    y.red_addr()
    for i in range(4):
        y.tr_piece()
    y.misc_loads()
    for i in range(5):
        y.dma_piece()
    y.s_compute()
    y.ug_setup()
    y.tr_piece()
    y.dma_piece()
    for ks in range(10):
        y.tr_piece()
        y.ug_load(ks)
    for ks in range(10, 22):
        y.ug_load(ks)
    a.wait_lgkm()
    a.I('s_barrier')
    y.reduce(y.SF)
    y.y_compute()
    a.I('s_barrier')
    y.reduce(y.T)
    y.final()
    a.label('L_ys_end')
    a.I('s_endpgm')
    return a.finalize()


def build(c, extra_launches=()):
    ks = [('ln_kernel', k_ln(c), 256, 17408, 80, 80), ('mid_kernel', k_mid(c), 256, 163840, 512, 256),
          ('red_kernel', k_red(c), 8, 0, 168, 168), ('ys_kernel', k_ys(c), 256, 163840, 512, 256)]
    s = header()
    for n, _, g, lds, _, _ in ks:
        s += '; @launch kernel=%s grid=(%d,1,1) block=(256,1,1) lds=%d\n' % (n, g, lds)
    s += '.amdgcn_target "amdgcn-amd-amdhsa--gfx950"\n.text\n'
    for n, body, _, _, _, _ in ks:
        s += '.globl %s\n.p2align 8\n.type %s,@function\n%s:\n%s' % (n, n, n, body)
    s += '.section .rodata,"a"\n'
    for n, _, _, _, v, acc in ks:
        s += '.p2align 6\n' + kd(n, v, acc)
    return s


if __name__ == '__main__':
    out = sys.argv[1] if len(sys.argv) > 1 else 'v1.s'
    open(out, 'w').write(build(Cfg()))
    print('wrote', out)
```

```python
import sys
sys.path.insert(0, "work")
from gen1 import *

def build2(c, order):
    ks = {'ln': ('ln_kernel', k_ln(c), 256, 17408, 80, 80), 'mid': ('mid_kernel', k_mid(c), 256, 163840, 512, 256),
          'red': ('red_kernel', k_red(c), 8, 0, 168, 168), 'ys': ('ys_kernel', k_ys(c), 256, 163840, 512, 256),
          'nop': ('nop_kernel', '    s_endpgm\n', 1, 0, 8, 8), 'nopb': ('nopb_kernel', '    s_endpgm\n', 256, 0, 8, 8)}
    s = header()
    for o in order:
        n, _, g, lds, _, _ = ks[o]
        s += '; @launch kernel=%s grid=(%d,1,1) block=(256,1,1) lds=%d\n' % (n, g, lds)
    s += '.amdgcn_target "amdgcn-amd-amdhsa--gfx950"\n.text\n'
    used = list(dict.fromkeys(order))
    for o in used:
        n, body, _, _, _, _ = ks[o]
        s += '.globl %s\n.p2align 8\n.type %s,@function\n%s:\n%s' % (n, n, n, body)
    s += '.section .rodata,"a"\n'
    for o in used:
        n, _, _, _, v, acc = ks[o]
        s += '.p2align 6\n' + kd(n, v, acc)
    return s
base = ['ln','mid','red','ys']
c = Cfg()
open('e_a.s','w').write(build2(c, base))
open('e_b.s','w').write(build2(c, base + ['nop']*4))
open('e_c.s','w').write(build2(c, ['nopb']*4 + base))
open('e_d.s','w').write(build2(c, base + base))
c2 = Cfg(); c2.wt = 'nt'; c2.xl = 'nt'
open('e_e.s','w').write(build2(c2, base))
c3 = Cfg(); c3.st = 'sc1'
open('e_f.s','w').write(build2(c3, base))
```
